```python
import torch

def _softmax(x, axis=-1):
    return torch.softmax(x, dim=axis)
def _gelu(x):
    return torch.nn.functional.gelu(x, approximate="tanh")
def _silu(x):
    return torch.nn.functional.silu(x)
def _sigmoid(x):
    return torch.sigmoid(x)
def _layernorm(x, axis=-1, eps=1e-5):
    m = x.mean(dim=axis, keepdim=True)
    v = x.var(dim=axis, keepdim=True, unbiased=False)
    return (x - m) / torch.sqrt(v + eps)
def _scatter_add(tgt, idx, src, axis=0):
    return tgt.clone().index_add_(axis, idx, src)
def _segment_sum(src, seg, n):
    out = torch.zeros((n,) + src.shape[1:], dtype=src.dtype)
    return out.index_add_(0, seg, src)
def _pad(x, pw):
    flat = tuple(v for pair in reversed(pw) for v in pair)
    return torch.nn.functional.pad(x, flat)

kernel_name = 'parallel_sum__softmax_full_mha__dense_activation_squared_relu__prompt'

def setup_inputs():

    _w = (lambda a: (lambda t: t.to(torch.bfloat16) if t.is_floating_point() else t)(torch.as_tensor(a)))
    def _A_setup():
        B, S, D = 1, 2048, 448
        return {
            "x": _w((lambda *s: torch.randn(*s, dtype=torch.bfloat16) * 0.05)(B, S, D)),
            "wqkv": _w((lambda *s: torch.randn(*s, dtype=torch.bfloat16) * 0.2)(D, 3 * D)),
            "wo": _w((lambda *s: torch.randn(*s, dtype=torch.bfloat16) * 0.1)(D, D)),
        }
    _A_in = _A_setup()

    def _B_setup():
        B, S, D, F = 1, 2048, 448, 1792
        return {
            "x": _w((lambda *s: torch.randn(*s, dtype=torch.bfloat16) * 0.05)(B, S, D)),
            "w1": _w((lambda *s: torch.randn(*s, dtype=torch.bfloat16) * 0.1)(D, F)),
            "b1": _w((lambda *s: torch.randn(*s, dtype=torch.bfloat16) * 0.8)(F)),
            "w2": _w((lambda *s: torch.randn(*s, dtype=torch.bfloat16) * 0.1)(F, D)),
            "b2": _w((lambda *s: torch.randn(*s, dtype=torch.bfloat16) * 12.8)(D)),
        }
    _B_in = _B_setup()

    return {
        "A_x": _A_in["x"],
        "A_wqkv": _A_in["wqkv"],
        "A_wo": _A_in["wo"],
        "B_x": _B_in["x"],
        "B_w1": _B_in["w1"],
        "B_b1": _B_in["b1"],
        "B_w2": _B_in["w2"],
        "B_b2": _B_in["b2"],
    }

def reference(A_x, A_wqkv, A_wo, B_x, B_w1, B_b1, B_w2, B_b2):
    def _A_ref(x, wqkv, wo):
        B, S, D = x.shape
        H = 16; Dh = D // H
        qkv = (lambda x, *d: x.permute(*d))((x @ wqkv).reshape(B, S, 3, H, Dh), 2, 0, 3, 1, 4)
        q, k, v = qkv[0], qkv[1], qkv[2]
        scale = Dh ** -0.5
        scores = torch.einsum("bhqd,bhkd->bhqk", q, k) * scale
        p = _softmax(scores, axis=-1)
        o = torch.einsum("bhqk,bhkd->bhqd", p, v)
        return (lambda x, *d: x.permute(*d))(o, 0, 2, 1, 3).reshape(B, S, D) @ wo

    def _B_ref(x, w1, b1, w2, b2):
        h = torch.einsum("bsd,df->bsf", x, w1) + b1
        zero = torch.zeros_like(h)
        r = torch.where(h > zero, h, zero)
        h = r * r
        out = torch.einsum("bsf,fd->bsd", h, w2) + b2
        return out

    x = A_x
    xn = _layernorm(x, axis=-1)
    return x + _A_ref(xn, A_wqkv, A_wo) + _B_ref(xn, B_w1, B_b1, B_w2, B_b2)
```

```python
S_TOK = 2048; D = 448; H = 16; DH = 28; F = 1792
WS_Q = 0x000000
WS_K = 0x200000
WS_V = 0x400000
WS_O = 0x600000
WS_H = 0x800000
WS_FLAG = 0x1000000
WS_STAMP = 0x1100000
WS_SIZE = 0x10000000
NAME = "parallel_sum__softmax_full_mha__dense_activation_squared_relu__prompt"
KA_X, KA_WQKV, KA_WO, KA_BX, KA_W1, KA_B1, KA_W2, KA_B2, KA_OUT, KA_DBG, KA_WS = [8*i for i in range(11)]
QSCALE = (28 ** -0.5) * 1.4426950408889634
```

```python
import re
TRANS = ("v_exp_f32","v_log_f32","v_rcp_f32","v_rsq_f32","v_sqrt_f32","v_sin_f32","v_cos_f32","v_rcp_iflag_f32")
def regs_of(tok):
    tok = tok.strip()
    m = re.fullmatch(r"-?\|?(?:abs\()?([vas])(\d+)\)?\|?", tok)
    if m: return [(m.group(1), int(m.group(2)))]
    m = re.fullmatch(r"-?([vas])\[(\d+):(\d+)\]", tok)
    if m: return [(m.group(1), i) for i in range(int(m.group(2)), int(m.group(3))+1)]
    if tok in ("vcc",): return [("s","vcc")]
    if tok in ("exec","exec_lo","exec_hi"): return [("s","exec")]
    if tok == "m0": return [("s","m0")]
    return []
def parse(line):
    l = line.split(";")[0].strip()
    parts = l.split(None, 1)
    op = parts[0].replace("_e32","").replace("_e64","")
    ops = []
    if len(parts) > 1:
        ops = [t.strip() for t in re.split(r",(?![^\[]*\])", parts[1])]
        ops = [o.split()[0] if o else o for o in ops]
    return op, ops, l
def states(op, ops):
    if op == "s_nop": return int(ops[0], 0) + 1
    return 1
def classify(op, ops, l):
    R = lambda i: regs_of(ops[i]) if i < len(ops) else []
    k = dict(kind="other", w=[], r=[], a=[], b=[], c=[])
    if op.startswith("v_mfma"):
        k.update(kind="mfma", w=R(0), a=R(1), b=R(2), c=R(3), r=R(1)+R(2)+R(3))
    elif op.startswith("v_cmp"):
        k.update(kind="valu", w=R(0), r=sum((R(i) for i in range(1, len(ops))), []))
        if op.startswith("v_cmpx"): k["w"] = k["w"] + [("s","exec")]
    elif op.startswith("v_readfirstlane") or op.startswith("v_readlane"):
        k.update(kind="valu", w=R(0), r=sum((R(i) for i in range(1, len(ops))), []), lane=True)
    elif op.startswith("v_permlane32_swap") or op.startswith("v_permlane16_swap"):
        k.update(kind="valu", w=R(0)+R(1), r=R(0)+R(1), perm=True)
    elif op.startswith("v_"):
        w = R(0); r = sum((R(i) for i in range(1, len(ops))), [])
        if op in ("v_fmac_f32","v_dot2c_f32_bf16","v_pk_fmac_f16"): r = r + w
        if op.startswith("v_add_co") or op.startswith("v_addc_co") or op.startswith("v_sub_co"):
            w = R(0)+R(1); r = sum((R(i) for i in range(2, len(ops))), [])
        if op == "v_cndmask_b32" and len(ops) == 3: r = r + [("s","vcc")]
        k.update(kind="valu", w=w, r=r, trans=op in TRANS)
    elif op.startswith("buffer_load") or op.startswith("global_load"):
        if " lds" in l:
            k.update(kind="vmem", w=[], r=sum((R(i) for i in range(0, len(ops))), []) + [("s","m0")], dma=True)
        else:
            k.update(kind="vmem", w=R(0), r=sum((R(i) for i in range(1, len(ops))), []))
    elif op.startswith("buffer_store") or op.startswith("global_store") or op.startswith("buffer_atomic") or op.startswith("global_atomic"):
        k.update(kind="vmem", w=[], r=sum((R(i) for i in range(0, len(ops))), []), store=True, wide=("x4" in op or "x3" in op), data=(R(0) if op.startswith("buffer") else R(1)))
    elif op.startswith("ds_read"):
        k.update(kind="ds", w=R(0), r=R(1))
    elif op.startswith("ds_write") or op.startswith("ds_add"):
        k.update(kind="ds", w=[], r=sum((R(i) for i in range(0, len(ops))), []))
    elif op.startswith("ds_"):
        k.update(kind="ds", w=R(0), r=sum((R(i) for i in range(1, len(ops))), []))
    elif op.startswith("s_"):
        if op.startswith("s_cmp") or op.startswith("s_cbranch") or op in ("s_waitcnt","s_nop","s_barrier","s_branch","s_endpgm","s_setprio","s_sleep"):
            k.update(kind="salu", w=[], r=sum((R(i) for i in range(len(ops))), []))
        else:
            k.update(kind="salu", w=R(0), r=sum((R(i) for i in range(1, len(ops))), []))
    return k
def check(lines, window=24, verbose=True):
    ins = []
    for idx, line in enumerate(lines):
        l = line.strip()
        if not l or l.endswith(":") or l.startswith(".") or l.startswith(";"):
            continue
        op, ops, txt = parse(l)
        ins.append((idx, op, ops, txt, classify(op, ops, txt)))
    errs = []
    n = len(ins)
    for i in range(n):
        idx, op, ops, txt, k = ins[i]
        dist = 0
        for j in range(i-1, max(-1, i-window-1), -1):
            pidx, pop, pops, ptxt, p = ins[j]
            if pop in ("s_branch", "s_endpgm"): break
            def need(nst, why):
                if dist < nst: errs.append((idx, f"{why}: need {nst} have {dist}: [{ptxt}] -> [{txt}]"))
            pw = set(p["w"]); kr = set(k["r"]); kw = set(k["w"])
            vw = {x for x in pw if x[0] in "va"}
            sw = {x for x in pw if x[0] == "s"}
            if p["kind"] == "valu":
                if k["kind"] == "mfma" and vw & kr: need(2, "VALU->MFMA")
                if p.get("trans") and k["kind"] == "valu" and not k.get("trans") and vw & kr: need(1, "trans->VALU")
                if k.get("perm") and vw & kr: need(2, "VALU->permlane")
                if k.get("lane") and vw & kr: need(1, "VALU->readlane")
                if sw - {("s","exec")}:
                    if k["kind"] == "valu" and (sw & kr): need(2, "VALU sgpr->VALU")
                    if k["kind"] == "vmem" and (sw & kr): need(5, "VALU sgpr->VMEM")
                if ("s","exec") in sw and k["kind"] == "mfma": need(4, "VALU exec->MFMA")
            if p["kind"] == "mfma":
                D = set(p["w"])
                if k["kind"] == "mfma":
                    if D & (set(k["a"]) | set(k["b"])): need(12, "MFMA D->MFMA A/B")
                    c = set(k["c"])
                    if (D & c) and c != D: need(10, "MFMA D->MFMA C partial")
                elif k["kind"] in ("valu",):
                    if D & (kr | kw): need(12, "MFMA D->VALU")
                    if set(p["c"]) & kw and not (D & kw): need(7, "MFMA C read->VALU write")
                elif k["kind"] in ("vmem", "ds"):
                    if D & (kr | kw): need(12, "MFMA D->mem")
            if p["kind"] == "salu" and ("s","m0") in sw and k.get("dma"): need(1, "m0->DMA")
            if p.get("store") and p.get("wide") and k["kind"] == "valu" and set(p["data"]) & kw: need(2, "wide store WAR")
            dist += states(pop, pops)
            if dist >= 13: break
    if verbose:
        for e in errs[:40]: print("HAZARD", e)
    return errs
```

```python
import sys, struct
from asmlib import *
from common import *
import hazard
def f2u(x): return struct.unpack("<I", struct.pack("<f", x))[0]

SWS=4; SX=8; SWQ=12; SW1=16; SB1=20; SW2=24; SWO=28; SB2=32; SOUT=36; SDBG=40
SW=44; STB=45; SG=46; SPAIR0=47; SNPAIR=48
T0=49; T1=50; T2=51; T3=52; T4=53
SONES=54; SMASK=55; SQS=56; SHEAD=57; SQB=58; STB64=59; SCB=60; SKOFF=61; SVOFF=62; SQBASE=63
SHB=64; SOB=65; SWROW=66; SLB=67; SDM0=68; SDG=69; SPC=70
SSPIN=72
FLAG1 = WS_FLAG; FLAG2 = WS_FLAG + 2048; FLAG3 = WS_FLAG + 4096
SPIN_MAX = 200000

class Opt:
    stamps=False; margin=92; code_pf=True; tlb_warm=True; sc="sc1"; h_first=6; xo=26

class G:
    def __init__(self, opt):
        self.A = Asm(); self.q = []; self.o = opt; self.nlab = 0
    def __call__(self, s_): self.A(s_)
    def label(self, n): self.A.label(n)
    def newlab(self, p):
        self.nlab += 1; return f"L_{p}_{self.nlab}"
    def issue(self, tag): self.q.append(tag)
    def wait(self, tags):
        if isinstance(tags, str): tags = (tags,)
        last = -1
        for i, t in enumerate(self.q):
            if t in tags: last = i
        if last < 0: return False
        n = len(self.q) - 1 - last
        self.A(f"s_waitcnt vmcnt({min(n,63)})")
        self.q = self.q[last+1:]
        return True
    def stamp(self, slot):
        if not self.o.stamps: return
        self.A(f"""s_memrealtime s[90:91]
        s_waitcnt lgkmcnt(0)
        v_mov_b32 v254, s90
        s_lshl_b32 s92, s2, 8
        s_lshl_b32 s90, s{SW}, 6
        s_add_u32 s92, s92, s90
        s_add_u32 s92, s92, {WS_STAMP + slot*4}
        v_mov_b32 v255, 0
        s_mov_b64 s[94:95], exec
        s_mov_b64 exec, 1
        buffer_store_dword v254, v255, s[{SWS}:{SWS+3}], s92 offen
        s_mov_b64 exec, s[94:95]""")
        self.issue("stamp")

def srd(g, reg, lo, size):
    g(f"s_mov_b32 s{reg}, s{lo}"); g(f"s_mov_b32 s{reg+1}, s{lo+1}"); g(f"s_mov_b32 s{reg+2}, {size}"); g(f"s_mov_b32 s{reg+3}, 0x00020000")
def bsrd(r): return f"s[{r}:{r+3}]"

VL16=2; VTRQ_A=3; VTRQ_B=4; VTR1=5; VXR=6; VWQ=7; VW1=8; VT1B=9
VX=16; VACC=128; VWF=176; VLT=212; VRR=228; VNM=230
VACCB=160; VWF1=192; VPK=216; VBA=(232,236); VBO=240; VBR=244
XPITCH=912; XWAVE=32*XPITCH; YBASE=4*XWAVE; C36=67584
LDS_BYTES=163840
def chunk_base(c): return YBASE + c*12288 if c < 3 else C36 + (c-3)*12288
def x(s_): return v(VX + 4*s_, 4)
VQ=16; VKV=48; VP=112; VO=128; VS=(192,208); VT=224
VTR4=240; VDMA4=241; VGO=242
RING=14; WLDS=RING*2048; RED_A=4*WLDS
V4ACC=16; V4WF=80; V4OF=104; V4XR=168; V4B2=176; V4T=184

def entry(g):
    o = g.o
    g("s_cmp_ge_u32 s2, 256")
    g("s_cbranch_scc1 L_done")
    g(f"s_load_dwordx16 s[64:79], s[0:1], 0")
    g(f"s_load_dwordx4 s[80:83], s[0:1], {KA_OUT}")
    g(f"s_load_dwordx2 s[84:85], s[0:1], {KA_WS}")
    g("v_lshrrev_b32 v1, 6, v0")
    g(f"s_and_b32 s{T0}, s2, 1")
    g(f"s_lshl_b32 s{T0}, s{T0}, 3")
    g(f"s_lshr_b32 s{T1}, s2, 5")
    g(f"v_readfirstlane_b32 s{SW}, v1")
    g(f"s_add_u32 s{STB}, s{T0}, s{T1}")
    g(f"s_lshr_b32 s{T0}, s2, 1")
    g(f"s_and_b32 s{T0}, s{T0}, 3")
    g(f"s_lshl_b32 s{T0}, s{T0}, 2")
    g(f"s_lshr_b32 s{T1}, s2, 3")
    g(f"s_and_b32 s{T1}, s{T1}, 3")
    g(f"s_add_u32 s{SG}, s{T0}, s{T1}")
    g("v_and_b32 v1, 63, v0")
    g(f"v_lshlrev_b32 v{VL16}, 4, v1")
    g(f"s_lshl_b32 s{T0}, s{STB}, 2")
    g(f"s_add_u32 s{T0}, s{T0}, s{SW}")
    g(f"s_mul_i32 s{T0}, s{T0}, {32*896}")
    g(f"s_mul_i32 s{T1}, s{SW}, {XWAVE}")
    g(f"s_mov_b32 m0, s{T1}")
    g("s_waitcnt lgkmcnt(0)")
    srd(g, SX, 64, 1835008)
    srd(g, SWS, 84, WS_SIZE)
    g.stamp(0)
    g(f"s_or_b32 s{T2}, s2, s{SW}")
    g(f"s_cmp_lg_u32 s{T2}, 0")
    g("s_cbranch_scc1 L_noclear")
    g("v_lshlrev_b32 v10, 7, v1")
    g("v_mov_b32 v11, 0")
    g(f"s_mov_b32 s{T2}, {WS_FLAG}")
    g("s_mov_b32 exec_hi, 0xffff")
    g(f"buffer_store_dword v11, v10, {bsrd(SWS)}, s{T2} offen sc1")
    g("s_mov_b32 exec_hi, -1")
    g.label("L_noclear")
    g("s_mov_b32 exec_hi, 0x00ffffff")
    for r in range(32):
        g(f"buffer_load_dwordx4 v{VL16}, {bsrd(SX)}, s{T0} offen lds"); g.issue("x")
        if r < 31:
            g(f"s_addk_i32 m0, {XPITCH}")
            g(f"s_addk_i32 s{T0}, 896")
    g("s_mov_b32 exec_hi, -1")
    srd(g, SWQ, 66, 1204224); srd(g, SWO, 68, 401408); srd(g, SW1, 72, 1605632); srd(g, SB1, 74, 3584)
    srd(g, SW2, 76, 1605632); srd(g, SB2, 78, 896); srd(g, SOUT, 80, 1835008); srd(g, SDBG, 82, 256)

def dma_wq(g, c, i):
    g(f"s_lshl_b32 s{T2}, s{SW}, 10")
    g(f"s_add_u32 m0, s{T2}, {chunk_base(c) + i*4096}")
    g(f"s_mov_b32 s{T0}, {c*64*2688 + i*56}")
    g(f"buffer_load_dwordx4 v{VWQ}, {bsrd(SWQ)}, s{T0} offen lds"); g.issue(f"c{c}")
def dma_pair(g, base, n, tag, second):
    g(f"s_lshl_b32 s{T2}, s{SW}, 10")
    g(f"s_add_u32 m0, s{T2}, {base + n*4096}")
    g(f"s_lshl_b32 s{T0}, s{SPAIR0}, 7")
    g(f"s_add_u32 s{T0}, s{T0}, {n*32*3584 + (128 if second else 0)}")
    g(f"buffer_load_dwordx4 v{VW1}, {bsrd(SW1)}, s{T0} offen lds"); g.issue(tag)

def p1_setup(g):
    o = g.o
    g(f"v_lshrrev_b32 v10, 2, v1")
    g(f"s_lshl_b32 s{T0}, s{SW}, 4")
    g(f"v_add_u32 v10, s{T0}, v10")
    g(f"v_mul_u32_u24 v10, 2688, v10")
    g(f"v_and_b32 v11, 3, v1")
    g(f"v_lshlrev_b32 v11, 4, v11")
    g(f"s_mul_i32 s{T1}, s{SG}, 168")
    g(f"v_add3_u32 v{VWQ}, v10, v11, s{T1}")
    for c in range(3):
        for i in range(3): dma_wq(g, c, i)
    if o.code_pf:
        g(f"s_getpc_b64 s[{SPC}:{SPC+1}]")
        g.label("L_pc")
        g(f"s_lshr_b32 s{T0}, s2, 3")
        g(f"s_lshl_b32 s{T0}, s{T0}, 11")
        g(f"s_lshl_b32 s{T1}, s{SW}, 9")
        g(f"s_add_u32 s{T0}, s{T0}, s{T1}")
        g(f"s_min_u32 s{T0}, s{T0}, L_code_end-L_pc-512")
        g(f"v_lshlrev_b32 v12, 3, v1")
        g(f"v_add_u32 v12, s{T0}, v12")
        g(f"global_load_dwordx2 v[14:15], v12, s[{SPC}:{SPC+1}]"); g.issue("pf")
    g(f"s_lshr_b32 s{T0}, s{SG}, 2")
    g(f"s_mul_i32 s{T0}, s{T0}, 7")
    g(f"s_and_b32 s{T1}, s{SG}, 3")
    g(f"s_lshl_b32 s{T2}, s{T1}, 1")
    g(f"s_add_u32 s{SPAIR0}, s{T0}, s{T2}")
    g(f"s_cmp_lt_u32 s{T1}, 3")
    g(f"s_cselect_b32 s{SNPAIR}, 2, 1")
    g(f"v_lshrrev_b32 v10, 2, v1")
    g(f"v_and_b32 v10, 7, v10")
    g(f"s_lshl_b32 s{T0}, s{SW}, 3")
    g(f"v_add_u32 v10, s{T0}, v10")
    g(f"v_mul_u32_u24 v10, 3584, v10")
    g(f"v_lshrrev_b32 v12, 5, v1")
    g(f"v_lshlrev_b32 v13, 6, v12")
    g(f"v_add3_u32 v{VW1}, v10, v11, v13")
    g(f"v_lshrrev_b32 v10, 2, v1")
    g(f"v_and_b32 v10, 3, v10")
    g(f"v_lshlrev_b32 v10, 6, v10")
    g(f"v_lshrrev_b32 v11, 4, v1")
    g(f"v_and_b32 v11, 1, v11")
    g(f"v_lshlrev_b32 v11, 5, v11")
    g(f"v_and_b32 v13, 3, v1")
    g(f"v_lshlrev_b32 v13, 3, v13")
    g(f"v_add3_u32 v10, v10, v11, v13")
    g(f"v_lshlrev_b32 v11, 9, v12")
    g(f"v_add_u32 v11, v10, v11")
    g(f"v_add_u32 v{VTRQ_A}, {YBASE}, v11")
    g(f"v_add_u32 v{VTRQ_B}, {C36}, v11")
    g(f"v_lshlrev_b32 v11, 10, v12")
    g(f"v_add_u32 v{VTR1}, v10, v11")
    g(f"v_add_u32 v{VT1B}, {C36}, v{VTR1}")
    g(f"v_and_b32 v10, 31, v1")
    g(f"v_mul_u32_u24 v10, {XPITCH}, v10")
    g(f"v_lshlrev_b32 v11, 4, v12")
    g(f"s_mul_i32 s{T0}, s{SW}, {XWAVE}")
    g(f"v_add3_u32 v{VXR}, v10, v11, s{T0}")
    g(f"s_mov_b32 s{SONES}, 0x3f803f80")
    g(f"s_mov_b32 s{SMASK}, 0xffff0000")
    g(f"s_mov_b32 s{SQS}, {hex(f2u(QSCALE))}")
    g(f"s_and_b32 s{T0}, s2, 7")
    g(f"s_lshl_b32 s{T0}, s{T0}, 1")
    g(f"s_lshr_b32 s{T1}, s2, 3")
    g(f"s_and_b32 s{SHEAD}, s{T1}, 1")
    g(f"s_add_u32 s{SHEAD}, s{SHEAD}, s{T0}")
    g(f"s_lshr_b32 s{SQB}, s2, 4")
    g(f"s_min_u32 s{T1}, s{T1}, 27")
    g(f"s_mul_i32 s{T2}, s{T1}, 37")
    g(f"s_lshr_b32 s{T2}, s{T2}, 8")
    g(f"s_mul_i32 s{T3}, s{T2}, 7")
    g(f"s_sub_u32 s{SCB}, s{T1}, s{T3}")
    g(f"s_and_b32 s{T0}, s2, 7")
    g(f"s_lshl_b32 s{T0}, s{T0}, 2")
    g(f"s_add_u32 s{STB64}, s{T0}, s{T2}")

def ln_norm(g, s_, part=None):
    t = VLT + 8*(s_ & 1); L = []
    for k in range(4):
        L.append(f"v_lshlrev_b32 v{t+2*k}, 16, v{VX+4*s_+k}")
        L.append(f"v_and_b32 v{t+2*k+1}, s{SMASK}, v{VX+4*s_+k}")
    for k in range(4): L.append(f"v_pk_fma_f32 {v(t+2*k,2)}, {v(t+2*k,2)}, {v(VRR,2)}, {v(VNM,2)} op_sel_hi:[1,0,0]")
    for k in range(4): L.append(f"v_cvt_pk_bf16_f32 v{VX+4*s_+k}, v{t+2*k}, v{t+2*k+1}")
    return L

def p1(g):
    o = g.o
    g.stamp(1)
    g.wait("x")
    g(f"s_or_b32 s{T2}, s2, s{SW}")
    g(f"s_cmp_lg_u32 s{T2}, 0")
    g("s_cbranch_scc1 L_noflag")
    g("v_mov_b32 v10, 0"); g("v_mov_b32 v11, 1")
    g("s_mov_b64 exec, 1")
    g(f"buffer_store_dword v11, v10, {bsrd(SDBG)}, 0 offen sc1")
    g("s_mov_b64 exec, -1")
    g.label("L_noflag")
    SA = VLT; QA = VLT+4
    for k in range(8): g(f"v_mov_b32 v{SA+k}, 0")
    for s_ in range(8): g(f"ds_read_b128 {x(s_)}, v{VXR} offset:{s_*32}")
    for s_ in range(28):
        g(f"s_waitcnt lgkmcnt({min(7, 27-s_)})")
        if s_ + 8 < 28: g(f"ds_read_b128 {x(s_+8)}, v{VXR} offset:{(s_+8)*32}")
        for k in range(4):
            g(f"v_dot2c_f32_bf16 v{SA+k}, s{SONES}, v{VX+4*s_+k}")
            g(f"v_dot2c_f32_bf16 v{QA+k}, v{VX+4*s_+k}, v{VX+4*s_+k}")
        if s_ == 20:
            pass
    g("s_barrier")
    g.stamp(2)
    g("s_nop 2")
    g(f"v_add_f32 v{SA}, v{SA}, v{SA+1}"); g(f"v_add_f32 v{SA+2}, v{SA+2}, v{SA+3}")
    g(f"v_add_f32 v{QA}, v{QA}, v{QA+1}"); g(f"v_add_f32 v{QA+2}, v{QA+2}, v{QA+3}")
    g(f"v_add_f32 v{SA}, v{SA}, v{SA+2}"); g(f"v_add_f32 v{QA}, v{QA}, v{QA+2}")
    g(f"v_mov_b32 v{SA+1}, v{SA}"); g(f"v_mov_b32 v{QA+1}, v{QA}")
    dma_wq(g, 3, 0)
    g(f"v_permlane32_swap_b32 v{SA}, v{SA+1}")
    g(f"v_permlane32_swap_b32 v{QA}, v{QA+1}")
    g(f"v_add_f32 v{SA}, v{SA}, v{SA+1}")
    g(f"v_add_f32 v{QA}, v{QA}, v{QA+1}")
    g(f"v_mul_f32 v{SA}, {hex(f2u(1.0/448))}, v{SA}")
    g(f"v_mul_f32 v{QA}, {hex(f2u(1.0/448))}, v{QA}")
    g(f"v_fma_f32 v{QA}, -v{SA}, v{SA}, v{QA}")
    g(f"v_max_f32 v{QA}, 0, v{QA}")
    g(f"v_add_f32 v{QA}, {hex(f2u(1e-5))}, v{QA}")
    g(f"v_rsq_f32 v{VRR}, v{QA}")
    dma_wq(g, 3, 1)
    g(f"v_mul_f32 v{VNM}, v{SA}, v{VRR}")
    g(f"v_sub_f32 v{VNM}, 0, v{VNM}")
    dma_wq(g, 3, 2)
    for s_ in range(2):
        for l in ln_norm(g, s_): g(l)
    def wf(b, i, half=None):
        base = VWF + 12*b + 4*i
        return v(base, 4) if half is None else v(base + 2*half, 2)
    def rd_q(s_, i):
        c = s_ >> 2; b = s_ % 3
        reg = VTRQ_A if c < 3 else VTRQ_B
        off = (c*12288 if c < 3 else (c-3)*12288) + i*4096 + (s_ & 3)*1024
        g(f"ds_read_b64_tr_b16 {wf(b,i,0)}, v{reg} offset:{off}")
        g(f"ds_read_b64_tr_b16 {wf(b,i,1)}, v{reg} offset:{off+256}")
    saved = list(g.q)
    dmas = [("q", c, i) for c in range(4, 7) for i in range(3)] + [("p", n) for n in range(14)]
    def gemm(nv):
        g.q = list(saved)
        g.wait(("c0","c1","c2")); g("s_barrier")
        for s_ in range(2):
            for i in range(3): rd_q(s_, i)
        pend = list(dmas)
        for s_ in range(28):
            if s_ == 10: g.wait(("c3","c4")); g("s_barrier")
            if s_ == 18: g.wait(("c5","c6")); g("s_barrier")
            ln = ln_norm(g, s_+2) if s_+2 < 28 else []
            g(f"s_waitcnt lgkmcnt({6 if s_+1 <= 27 else 0})")
            for i in range(3):
                c_ = v(VACC+16*i, 16) if s_ > 0 else 0
                d_ = v(VACC+16*i, 16)
                if nv[i]: g(mfma(d_, x(s_), wf(s_ % 3, i), c_))
                else:     g(mfma(d_, wf(s_ % 3, i), x(s_), c_))
                if s_ + 2 <= 27: rd_q(s_+2, i)
                for l in ln[(0, 5, 10)[i]:(5, 10, 16)[i]]: g(l)
            ndma = 2 if s_ < 5 else 1
            for _ in range(ndma):
                if pend:
                    d = pend.pop(0)
                    if d[0] == "q": dma_wq(g, d[1], d[2])
                    else: dma_pair(g, 0, d[1], "pA", False)
        assert not pend
    g(f"s_cmp_ge_u32 s{SG}, 11")
    g("s_cbranch_scc1 L_gemm_vvv")
    g(f"s_cmp_eq_u32 s{SG}, 10")
    g("s_cbranch_scc1 L_gemm_kkv")
    gemm((0,0,0))
    g("s_branch L_gemm_done")
    g.label("L_gemm_kkv"); gemm((0,0,1))
    g("s_branch L_gemm_done")
    g.label("L_gemm_vvv"); gemm((1,1,1))
    g.label("L_gemm_done")
    g.stamp(3)
    g(f"v_and_b32 v11, 31, v0")
    g(f"v_lshlrev_b32 v11, 1, v11")
    for k in range(4): g(f"v_mov_b32 v{VBR+k}, 0")
    g(f"s_lshl_b32 s{T0}, s{SPAIR0}, 7")
    g("s_mov_b32 exec_hi, 0")
    for k in range(4):
        g(f"buffer_load_ushort v{VBR+k}, v11, {bsrd(SB1)}, s{T0} offen offset:{64*k}"); g.issue("b1")
    g("s_mov_b32 exec_hi, -1")
    for i in range(3):
        a0 = VACC + 16*i; p0 = VLT + 8*(i & 1)
        g(f"s_mul_i32 s{T0}, s{SG}, 3")
        g(f"s_add_u32 s{T0}, s{T0}, {i}")
        g(f"s_lshr_b32 s{T1}, s{T0}, 4")
        g(f"s_and_b32 s{T0}, s{T0}, 15")
        g(f"s_lshl_b32 s{T0}, s{T0}, 6")
        g(f"s_lshl_b32 s{T2}, s{STB}, 2")
        g(f"s_add_u32 s{T0}, s{T0}, s{T2}")
        g(f"s_add_u32 s{T0}, s{T0}, s{SW}")
        g(f"s_lshl_b32 s{T0}, s{T0}, 11")
        g(f"s_lshl_b32 s{T2}, s{T1}, 21")
        g(f"s_add_u32 s{T4}, s{T0}, s{T2}")
        g(f"s_cmp_lg_u32 s{T1}, 0")
        g(f"s_cbranch_scc1 L_noscale_{i}")
        for r in range(0, 16, 2): g(f"v_pk_mul_f32 {v(a0+r,2)}, {v(a0+r,2)}, s[{SQS}:{SQS+1}] op_sel_hi:[1,0]")
        g.label(f"L_noscale_{i}")
        for r in range(8): g(f"v_cvt_pk_bf16_f32 v{p0+r}, v{a0+2*r}, v{a0+2*r+1}")
        g(f"s_cmp_eq_u32 s{T1}, 2")
        g(f"s_cbranch_scc1 L_padv_{i}")
        g(f"s_cmp_eq_u32 s{T1}, 1")
        g(f"s_cselect_b32 s{T2}, 0x3f80, 0")
        g("s_mov_b32 exec_lo, 0")
        g(f"v_mov_b32 v{p0+6}, s{T2}")
        g(f"v_mov_b32 v{p0+7}, 0")
        g("s_mov_b32 exec_lo, -1")
        g(f"s_branch L_padd_{i}")
        g.label(f"L_padv_{i}")
        g("s_mov_b32 exec_lo, 0x10000000")
        g("s_mov_b32 exec_hi, 0x10000000")
        for r in range(8): g(f"v_mov_b32 v{p0+r}, s{SONES}")
        g("s_mov_b64 exec, -1")
        g.label(f"L_padd_{i}")
        g(f"buffer_store_dwordx4 {v(p0,4)}, v{VL16}, {bsrd(SWS)}, s{T4} offen {o.sc}"); g.issue("qkv")
        g(f"buffer_store_dwordx4 {v(p0+4,4)}, v{VL16}, {bsrd(SWS)}, s{T4} offen offset:1024 {o.sc}"); g.issue("qkv")
    g("v_mov_b32 v12, 0")
    g(f"buffer_load_dword v13, v12, {bsrd(SDBG)}, 0 offen sc1"); g.issue("dbg")
    g.stamp(4)

def spin_guard(g, lab):
    g(f"s_add_u32 s{SSPIN}, s{SSPIN}, 1")
    g(f"s_cmp_lt_u32 s{SSPIN}, {SPIN_MAX}")
    g(f"s_cbranch_scc1 {lab}")
    g("s_endpgm")

def p2(g):
    o = g.o
    for r in range(12): g(f"v_mov_b32 v{VBA[0]+r}, 0")
    g("s_mov_b32 exec_hi, 0")
    g(f"v_mov_b32 v{VBO}, 0x3f80")
    g("s_mov_b32 exec_hi, -1")
    def wf1(b, p, half=None):
        base = VWF1 + 8*b + 4*p
        return v(base, 4) if half is None else v(base + 2*half, 2)
    def rd_1(reg, s_, p):
        b = s_ % 3; off = s_*2048 + p*512
        g(f"ds_read_b64_tr_b16 {wf1(b,p,0)}, v{reg} offset:{off}")
        g(f"ds_read_b64_tr_b16 {wf1(b,p,1)}, v{reg} offset:{off+256}")
    def h_epilogue(a0):
        L = []
        for p in range(2):
            b = a0 + 16*p; p0 = VPK + 8*p
            for r in range(16): L.append((f"v_max_f32 v{b+r}, 0, v{b+r}", None))
            for r in range(0, 16, 2): L.append((f"v_pk_mul_f32 {v(b+r,2)}, {v(b+r,2)}, {v(b+r,2)}", None))
            for r in range(8): L.append((f"v_cvt_pk_bf16_f32 v{p0+r}, v{b+2*r}, v{b+2*r+1}", None))
            L.append((f"buffer_store_dwordx4 {v(p0,4)}, v{VL16}, {bsrd(SWS)}, s{T4} offen offset:{p*2048} {o.sc}", "hst"))
            L.append((f"buffer_store_dwordx4 {v(p0+4,4)}, v{VL16}, {bsrd(SWS)}, s{T4} offen offset:{p*2048+1024} {o.sc}", "hst"))
        return L
    def h_addr(second):
        g(f"s_lshl_b32 s{T0}, s{SPAIR0}, 1")
        if second: g(f"s_add_u32 s{T0}, s{T0}, 2")
        g(f"s_lshl_b32 s{T1}, s{STB}, 2")
        g(f"s_add_u32 s{T1}, s{T1}, s{SW}")
        g(f"s_mul_i32 s{T1}, s{T1}, 56")
        g(f"s_add_u32 s{T0}, s{T0}, s{T1}")
        g(f"s_lshl_b32 s{T0}, s{T0}, 11")
        g(f"s_add_u32 s{T4}, s{T0}, {WS_H}")
    def pair_gemm(reg, a0, kb, fill, hooks):
        for s_ in range(2):
            for p in range(2): rd_1(reg, s_, p)
        g(f"v_mov_b32 v{VBA[0]}, v{VBR+kb}")
        g(f"v_mov_b32 v{VBA[1]}, v{VBR+kb+1}")
        g("s_nop 1")
        g(mfma(v(a0,16), v(VBA[0],4), v(VBO,4), 0))
        g(mfma(v(a0+16,16), v(VBA[1],4), v(VBO,4), 0))
        fill = list(fill)
        for s_ in range(28):
            if s_ in hooks: hooks[s_]()
            g(f"s_waitcnt lgkmcnt({4 if s_+1 <= 27 else 0})")
            for p in range(2):
                g(mfma(v(a0+16*p,16), wf1(s_ % 3, p), x(s_), v(a0+16*p,16)))
                if s_ + 2 <= 27: rd_1(reg, s_+2, p)
                for _ in range(2):
                    if fill and s_ >= 1:
                        t, tag = fill.pop(0); g(t)
                        if tag: g.issue(tag)
        for t, tag in fill:
            g(t)
            if tag: g.issue(tag)
    g.wait(("pA", "b1"))
    g("s_barrier")
    def publish_kv():
        g.wait("dbg")
        lab = g.newlab("dbgspin")
        g(f"s_mov_b32 s{SSPIN}, 0")
        g(f"v_readfirstlane_b32 s{T0}, v13")
        g(f"s_cmp_lg_u32 s{T0}, 0")
        g(f"s_cbranch_scc1 {lab}_ok")
        g.label(lab)
        g(f"buffer_load_dword v13, v12, {bsrd(SDBG)}, 0 offen sc1")
        g("s_waitcnt vmcnt(0)")
        g(f"v_readfirstlane_b32 s{T0}, v13")
        g(f"s_cmp_lg_u32 s{T0}, 0")
        g(f"s_cbranch_scc1 {lab}_ok")
        spin_guard(g, lab)
        g.label(lab + "_ok")
        g("s_barrier")
        g(f"s_cmp_lg_u32 s{SW}, 0")
        g(f"s_cbranch_scc1 {lab}_np")
        g(f"s_lshl_b32 s{T0}, s{SG}, 7")
        g(f"s_add_u32 s{T0}, s{T0}, {FLAG1}")
        g("v_mov_b32 v14, 1")
        g("s_mov_b64 exec, 1")
        g(f"buffer_atomic_add v14, v12, {bsrd(SWS)}, s{T0} offen sc1")
        g("s_mov_b64 exec, -1")
        g.label(lab + "_np")
        g.stamp(5)
    def dma_b(n0, n1):
        def f():
            lab = g.newlab("nopb")
            g(f"s_cmp_lt_u32 s{SNPAIR}, 2")
            g(f"s_cbranch_scc1 {lab}")
            q0 = list(g.q)
            for n in range(n0, n1): dma_pair(g, C36, n, "pB", True)
            g.label(lab)
            g.q = q0 + ["pB?"]*0
        return f
    hooks = {10: publish_kv}
    for k in range(7): hooks[11 + 2*k] = dma_b(2*k, 2*k+2)
    pair_gemm(VTR1, VACC, 0, [], hooks)
    g.stamp(6)
    g(f"s_cmp_lt_u32 s{SNPAIR}, 2")
    g("s_cbranch_scc1 L_one_pair")
    q_split = list(g.q)
    g("s_waitcnt vmcnt(0)"); g.q = []
    g("s_barrier")
    h_addr(False)
    pair_gemm(VT1B, VACCB, 2, h_epilogue(VACC), {})
    g.stamp(7)
    attn_start(g, "a")
    h_addr(True)
    g("s_nop 3")
    for t, tag in h_epilogue(VACCB):
        g(t)
        if tag: g.issue(tag)
    q_two = list(g.q)
    g("s_branch L_attn_go")
    g.label("L_one_pair")
    g.q = list(q_split)
    attn_start(g, "b")
    h_addr(False)
    for t, tag in h_epilogue(VACC):
        g(t)
        if tag: g.issue(tag)
    q_one = list(g.q)
    tail = lambda q_: q_[q_.index("Q"):]
    assert tail(q_one) == tail(q_two), (tail(q_one), tail(q_two))
    g.q = tail(q_one)
    g.label("L_attn_go")

def q(i, ks): return v(VQ + 8*i + 4*ks, 4)
def o_(i): return v(VO + 16*i, 16)
def kf(b, ks): return v(VKV + 16*b + 4*ks, 4)
def vf(b, ks): return v(VKV + 16*b + 8 + 4*ks, 4)

def load_tile(g, j):
    sc = g.o.sc; b = j & 3
    g(f"buffer_load_dwordx4 {kf(b,0)}, v{VL16}, {bsrd(SWS)}, s{SKOFF} offen {sc}"); g.issue(f"L{j}")
    g(f"buffer_load_dwordx4 {kf(b,1)}, v{VL16}, {bsrd(SWS)}, s{SKOFF} offen offset:1024 {sc}"); g.issue(f"L{j}")
    g(f"buffer_load_dwordx4 {vf(b,0)}, v{VL16}, {bsrd(SWS)}, s{SVOFF} offen {sc}"); g.issue(f"L{j}")
    g(f"buffer_load_dwordx4 {vf(b,1)}, v{VL16}, {bsrd(SWS)}, s{SVOFF} offen offset:1024 {sc}"); g.issue(f"L{j}")
    if j < 15:
        g(f"s_addk_i32 s{SKOFF}, 2048")
        g(f"s_addk_i32 s{SVOFF}, 2048")

def poll(g, name, voff, target, nlanes):
    lab = g.newlab(name)
    g(f"s_mov_b32 s{SSPIN}, 0")
    g(f"s_mov_b64 exec, {(1 << nlanes) - 1}")
    g.label(lab)
    g(f"buffer_load_dword v14, v{voff}, {bsrd(SWS)}, s{T3} offen sc1")
    g("s_waitcnt vmcnt(0)")
    g(f"v_cmp_gt_u32 vcc, {target}, v14")
    g("s_cmp_eq_u64 vcc, 0")
    g(f"s_cbranch_scc1 {lab}_ok")
    spin_guard(g, lab)
    g.label(lab + "_ok")
    g("s_mov_b64 exec, -1")

def attn_start(g, tag):
    sc = g.o.sc
    lab = f"L_as_{tag}"
    g(f"s_cmp_lg_u32 s{SW}, 0")
    g(f"s_cbranch_scc1 {lab}")
    g(f"v_and_b32 v10, 63, v0")
    g(f"v_lshlrev_b32 v10, 4, v10")
    g(f"v_add_u32 v10, s{SHEAD}, v10")
    g(f"v_mul_u32_u24 v10, 43, v10")
    g(f"v_lshrrev_b32 v10, 7, v10")
    g(f"v_lshlrev_b32 v10, 7, v10")
    g(f"s_mov_b32 s{T3}, {FLAG1}")
    q0 = list(g.q)
    poll(g, "kv", 10, 16, 3)
    g.q = q0
    g.label(lab)
    g("s_barrier")
    g.stamp(8)
    g(f"s_lshl_b32 s{T0}, s{SHEAD}, 17")
    g(f"s_lshl_b32 s{T1}, s{SQB}, 13")
    g(f"s_add_u32 s{SQBASE}, s{T0}, s{T1}")
    g(f"s_lshl_b32 s{T1}, s{SW}, 15")
    g(f"s_add_u32 s{SKOFF}, s{T0}, s{T1}")
    g(f"s_add_u32 s{SVOFF}, s{SKOFF}, {WS_V}")
    g(f"s_add_u32 s{SKOFF}, s{SKOFF}, {WS_K}")
    g(f"s_add_u32 s{T2}, s{T0}, {WS_K}")
    for i in range(4):
        g(f"s_add_u32 s{T0}, s{SW}, {i+1}")
        g(f"s_and_b32 s{T0}, s{T0}, 3")
        g(f"s_lshl_b32 s{T0}, s{T0}, 11")
        g(f"s_add_u32 s{T0}, s{T0}, s{SQBASE}")
        g(f"buffer_load_dwordx4 {q(i,0)}, v{VL16}, {bsrd(SWS)}, s{T0} offen {sc}"); g.issue("Q")
        g(f"buffer_load_dwordx4 {q(i,1)}, v{VL16}, {bsrd(SWS)}, s{T0} offen offset:1024 {sc}"); g.issue("Q")
    g(f"buffer_load_dwordx4 {v(VP,4)}, v{VL16}, {bsrd(SWS)}, s{T2} offen {sc}"); g.issue("Q")
    g(f"buffer_load_dwordx4 {v(VP+4,4)}, v{VL16}, {bsrd(SWS)}, s{T2} offen offset:1024 {sc}"); g.issue("Q")
    for j in range(3): load_tile(g, j)

def p4_setup(g):
    g(f"v_and_b32 v1, 63, v0")
    g(f"v_lshrrev_b32 v10, 2, v1")
    g(f"v_and_b32 v11, 3, v10")
    g(f"v_lshlrev_b32 v11, 6, v11")
    g(f"v_lshrrev_b32 v12, 4, v1")
    g(f"v_and_b32 v12, 1, v12")
    g(f"v_lshlrev_b32 v12, 5, v12")
    g(f"v_and_b32 v13, 3, v1")
    g(f"v_lshlrev_b32 v14, 3, v13")
    g(f"v_add3_u32 v11, v11, v12, v14")
    g(f"v_lshrrev_b32 v12, 5, v1")
    g(f"v_lshlrev_b32 v14, 8, v12")
    g(f"s_mul_i32 s{SLB}, s{SW}, {WLDS}")
    g(f"v_add3_u32 v{VTR4}, v11, v14, s{SLB}")
    g(f"v_and_b32 v10, 7, v10")
    g(f"v_mul_u32_u24 v10, 896, v10")
    g(f"v_lshlrev_b32 v12, 6, v12")
    g(f"v_lshlrev_b32 v13, 4, v13")
    g(f"v_add3_u32 v10, v10, v12, v13")
    g(f"s_lshl_b32 s{T0}, s{SCB}, 7")
    g(f"v_add_u32 v{VDMA4}, s{T0}, v10")
    g(f"s_mul_i32 s{T0}, s{STB64}, 112")
    g(f"s_mul_i32 s{T1}, s{SW}, 14")
    g(f"s_add_u32 s{T0}, s{T0}, s{T1}")
    g(f"s_lshl_b32 s{T0}, s{T0}, 11")
    g(f"s_add_u32 s{SHB}, s{T0}, {WS_H}")
    g(f"s_lshl_b32 s{T0}, s{STB64}, 5")
    g(f"s_lshl_b32 s{T1}, s{SW}, 2")
    g(f"s_add_u32 s{T0}, s{T0}, s{T1}")
    g(f"s_lshl_b32 s{T0}, s{T0}, 11")
    g(f"s_add_u32 s{SOB}, s{T0}, {WS_O}")
    g(f"s_mul_i32 s{SWROW}, s{SW}, {448*896}")
    g(f"s_mov_b32 s{SDM0}, s{SLB}")

NSTEP = 36
def w_dma_items(n):
    L = []
    for blk in range(2):
        L.append((f"s_add_u32 m0, s{SLB}, {(n % RING)*2048 + blk*1024}", None))
        if n < 28:
            L.append((f"s_add_u32 s{SDG}, s{SWROW}, {(16*n + 8*blk)*896}", None))
            L.append((f"buffer_load_dwordx4 v{VDMA4}, {bsrd(SW2)}, s{SDG} offen lds", f"W{n}"))
        else:
            hd, ks = (n-28) >> 1, (n-28) & 1
            L.append((f"s_add_u32 s{SDG}, s{SDM0}, {(hd*28 + 16*ks + 8*blk)*896}", None))
            L.append((f"buffer_load_dwordx4 v{VDMA4}, {bsrd(SWO)}, s{SDG} offen lds", f"W{n}"))
    return L
def bfrag(s_, tt):
    return a_(8*s_ + 4*tt, 4) if s_ < 28 else v(V4OF + 8*(s_-28) + 4*tt, 4)
def h_load_items(sc):
    L = []
    for s0 in range(0, 28, 4):
        for tt in range(2):
            L.append((f"s_add_u32 s{SDG}, s{SHB}, {tt*56*2048 + s0*1024}", None))
            for k in range(4):
                L.append((f"buffer_load_dwordx4 {bfrag(s0+k,tt)}, v{VL16}, {bsrd(SWS)}, s{SDG} offen offset:{k*1024} {sc}", "H"))
    return L

def emit_items(g, items):
    for t, tag in items:
        g(t)
        if tag: g.issue(tag)

def attention(g):
    o = g.o
    g.A.comment("==== attention ====")
    p4_setup(g)
    g(f"s_mul_i32 s{SDM0}, s{SW}, {4*28*896}")
    for r in range(4): g(f"v_mov_b32 v{VKV + 16*3 + 12 + r}, 0")
    g.wait("Q")
    for i in range(4): g(mfma(o_(i), v(VP,4), q(i,0), 0))
    for i in range(4): g(mfma(o_(i), v(VP+4,4), q(i,1), o_(i)))
    g("s_nop 8")
    M = VT
    for step in range(8):
        for i in range(4):
            b = VO + 16*i
            if step == 0: g(f"v_max3_f32 v{M+i}, v{b}, v{b+1}, v{b+2}")
            elif step < 7: g(f"v_max3_f32 v{M+i}, v{M+i}, v{b+1+2*step}, v{b+2+2*step}")
            else: g(f"v_max_f32 v{M+i}, v{M+i}, v{b+15}")
    for i in range(4): g(f"v_mov_b32 v{M+4+i}, v{M+i}")
    for r in range(4): g(f"v_mov_b32 v{VP+4+r}, 0")
    for i in range(4): g(f"v_permlane32_swap_b32 v{M+i}, v{M+4+i}")
    for i in range(4): g(f"v_max_f32 v{M+i}, v{M+i}, v{M+4+i}")
    for i in range(4): g(f"v_sub_f32 v{M+i}, {hex(f2u(-float(o.margin)))}, v{M+i}")
    g("s_mov_b32 exec_lo, 0")
    for i in range(4): g(f"v_cvt_pk_bf16_f32 v{VQ+8*i+6}, v{M+i}, 0")
    g("s_mov_b32 exec_lo, -1")
    for i in range(4): g(mfma(o_(i), v(VP+4,4), v(VP+4,4), 0))
    g.wait("L0")
    g(mfma(v(VS[0],16), kf(0,0), q(0,0), 0))
    g(mfma(v(VS[0],16), kf(0,1), q(0,1), v(VS[0],16)))
    g("s_nop 7"); g("s_nop 3")
    g.stamp(9)
    extra = {kt: [] for kt in range(16)}
    wl = []
    for n in range(RING): wl += w_dma_items(n)
    per = (len(wl) + 4)//5 // 3 * 3 + 3
    for kt in range(1, 6):
        extra[kt] += wl[:per]; wl = wl[per:]
    assert not wl
    hl = h_load_items(o.sc)
    nh = 16 - o.h_first - 1
    per = (len(hl) + nh - 1)//nh
    for kt in range(o.h_first, 15):
        extra[kt] += hl[:per]; hl = hl[per:]
    assert not hl
    def publish_h():
        g.wait("hst")
        g(f"s_lshl_b32 s{T0}, s{STB}, 7")
        g(f"s_add_u32 s{T0}, s{T0}, {FLAG2}")
        g(f"v_mov_b32 v{VT+8}, 0"); g(f"v_mov_b32 v{VT+9}, 1")
        g("s_mov_b64 exec, 1")
        g(f"buffer_atomic_add v{VT+9}, v{VT+8}, {bsrd(SWS)}, s{T0} offen sc1"); g.issue("atom")
        g("s_mov_b64 exec, -1")
    def hflag_issue():
        g(f"s_lshr_b32 s{T0}, s{STB64}, 1")
        g(f"s_lshl_b32 s{T0}, s{T0}, 7")
        g(f"s_add_u32 s{T3}, s{T0}, {FLAG2}")
        g(f"v_mov_b32 v10, 0")
        g(f"buffer_load_dword v11, v10, {bsrd(SWS)}, s{T3} offen sc1"); g.issue("hf")
    def hflag_check():
        g.wait("hf")
        lab = g.newlab("hf")
        g(f"v_readfirstlane_b32 s{T0}, v11")
        g(f"s_cmp_ge_u32 s{T0}, 64")
        g(f"s_cbranch_scc1 {lab}")
        q0 = list(g.q)
        poll(g, "hfp", 10, 64, 1)
        g.q = q0
        g.label(lab)
    red = {}
    for t in range(64):
        kt, qt = t >> 2, t & 3
        Sc = VS[t & 1]; Sn = VS[(t+1) & 1]
        nt = t + 1; nkt, nqt = nt >> 2, nt & 3
        has_next = nt < 64
        if t == 3: publish_h_done = False
        if has_next and nqt == 0: g.wait(f"L{nkt}")
        if t == 6: publish_h()
        if t == 4*o.h_first - 5: hflag_issue()
        if t == 4*o.h_first: hflag_check()
        def exps(a):
            for r in range(a, a+4): g(f"v_exp_f32 v{Sc+r}, v{Sc+r}")
            g(f"v_cvt_pk_bf16_f32 v{VP + a//2}, v{Sc+a}, v{Sc+a+1}")
            g(f"v_cvt_pk_bf16_f32 v{VP + a//2 + 1}, v{Sc+a+2}, v{Sc+a+3}")
        lst = extra[kt]
        n4 = (len(lst) + 3)//4
        mine = lst[qt*n4:(qt+1)*n4]
        h1 = (len(mine)+1)//2
        if has_next: g(mfma(v(Sn,16), kf(nkt & 3, 0), q(nqt, 0), 0))
        exps(0)
        if has_next: g(mfma(v(Sn,16), kf(nkt & 3, 1), q(nqt, 1), v(Sn,16)))
        emit_items(g, mine[:h1])
        exps(4)
        pt = t - 1; pkt, pqt = (pt >> 2, pt & 3)
        g(mfma(o_(pqt), vf(pkt & 3, 1), v(VP+4,4), o_(pqt)))
        if qt == 0 and kt + 3 <= 15: load_tile(g, kt + 3)
        emit_items(g, mine[h1:])
        if t == 61:
            for i in range(3):
                g(f"s_add_u32 s{T0}, s{SW}, {i+1}")
                g(f"s_and_b32 s{T0}, s{T0}, 3")
                g(f"s_mul_i32 s{T0}, s{T0}, 12288")
                g(f"s_add_u32 s{T0}, s{T0}, {RED_A + i*4096}")
                g(f"v_add_u32 v{VT+i}, s{T0}, v{VL16}")
            g(f"s_mul_i32 s{T0}, s{SW}, 12288")
            g(f"s_add_u32 s{T0}, s{T0}, {RED_A}")
            g(f"v_add_u32 v{VT+3}, s{T0}, v{VL16}")
        exps(8)
        g(mfma(o_(qt), vf(kt & 3, 0), v(VP,4), o_(qt)))
        if t == 62:
            for qd in range(4): g(f"ds_write_b128 v{VT}, {v(VO+4*qd, 4)} offset:{qd*1024}")
        if t == 63:
            for qd in range(4): g(f"ds_write_b128 v{VT+1}, {v(VO+16+4*qd, 4)} offset:{qd*1024}")
        exps(12)
    g("s_nop 1")
    g(mfma(o_(3), vf(3, 1), v(VP+4,4), o_(3)))
    g.stamp(10)
    g("s_nop 3")
    for qd in range(4): g(f"ds_write_b128 v{VT+2}, {v(VO+32+4*qd, 4)} offset:{qd*1024}")
    g("s_waitcnt lgkmcnt(0)")
    g("s_barrier")
    TT = (VS[0], VS[1], VKV)
    for i in range(3):
        for qd in range(4):
            g(f"ds_read_b128 {v(TT[i]+4*qd, 4)}, v{VT+3} offset:{i*4096+qd*1024}")
    OW = VO + 48
    for i in range(3):
        g(f"s_waitcnt lgkmcnt({8-4*i})")
        for r in range(0, 16, 2):
            g(f"v_pk_add_f32 {v(OW+r,2)}, {v(OW+r,2)}, {v(TT[i]+r,2)}")
    L = VT; U = VT+1; Z = VT+2
    g(f"v_mov_b32 v{L}, v{OW+12}")
    g(f"v_mov_b32 v{U}, v{OW+12}")
    g(f"v_mov_b32 v{VT+4}, 0")
    g(f"v_mov_b32 v{VT+5}, 0")
    g(f"v_permlane32_swap_b32 v{L}, v{U}")
    g(f"v_pk_mul_f32 {v(Z,2)}, {v(OW,2)}, {v(VT+4,2)}")
    for r in range(2, 16, 2):
        g(f"v_pk_fma_f32 {v(Z,2)}, {v(OW+r,2)}, {v(VT+4,2)}, {v(Z,2)}")
    g(f"v_add_f32 v{Z}, v{Z}, v{Z+1}")
    g(f"v_rcp_f32 v{L}, v{U}")
    g(f"v_cmp_eq_f32 vcc, 0, v{Z}")
    g(f"s_mov_b32 s{T0}, {hex(f2u(2.0**(-(o.margin+6))))}")
    g(f"v_cmp_le_f32 s[74:75], s{T0}, v{U}")
    g(f"s_mov_b32 s{T0}, {hex(f2u(2.0**110))}")
    g(f"v_cmp_ge_f32 s[76:77], s{T0}, v{U}")
    g("s_and_b64 vcc, vcc, s[74:75]")
    g("s_and_b64 vcc, vcc, s[76:77]")
    g("s_cmp_eq_u64 vcc, exec")
    g("s_cbranch_scc0 L_attn_slow")
    g.label("L_attn_fin")
    PKO = VS[0]
    for r in range(0, 16, 2):
        g(f"v_pk_mul_f32 {v(OW+r,2)}, {v(OW+r,2)}, {v(L,2)} op_sel_hi:[1,0]")
    for r in range(8):
        g(f"v_cvt_pk_bf16_f32 v{PKO+r}, v{OW+2*r}, v{OW+2*r+1}")
    g("s_mov_b32 exec_lo, 0")
    g(f"v_mov_b32 v{PKO+6}, 0")
    g(f"v_mov_b32 v{PKO+7}, 0")
    g("s_mov_b32 exec_lo, -1")
    g(f"s_lshl_b32 s{T0}, s{SQB}, 2")
    g(f"s_add_u32 s{T0}, s{T0}, s{SW}")
    g(f"s_lshl_b32 s{T0}, s{T0}, 4")
    g(f"s_add_u32 s{T0}, s{T0}, s{SHEAD}")
    g(f"s_lshl_b32 s{T0}, s{T0}, 11")
    g(f"s_add_u32 s{T0}, s{T0}, {WS_O}")
    g(f"buffer_store_dwordx4 {v(PKO,4)}, v{VL16}, {bsrd(SWS)}, s{T0} offen {o.sc}"); g.issue("Ost")
    g(f"buffer_store_dwordx4 {v(PKO+4,4)}, v{VL16}, {bsrd(SWS)}, s{T0} offen offset:1024 {o.sc}"); g.issue("Ost")
    g.stamp(11)

def attention_slow(g):
    sc = g.o.sc
    Sx = VS[0]; M = VT+8; T = VT+9; KB = VKV; O0 = VO+48; QI = 3
    g.label("L_attn_slow")
    g.A.comment("---- two-pass softmax with the true row max for this wave's own q tile (slot 3) ----")
    g("s_waitcnt vmcnt(0) lgkmcnt(0)")
    g("s_mov_b32 exec_lo, 0")
    g(f"v_mov_b32 v{VQ+8*QI+6}, 0")
    g("s_mov_b32 exec_lo, -1")
    g(f"v_mov_b32 v{M}, 0xff800000")
    g(f"s_lshl_b32 s{T2}, s{SHEAD}, 17")
    g(f"s_add_u32 s{T1}, s{T2}, {WS_K}")
    g(f"s_mov_b32 s{T0}, 0")
    g.label("L_slow_max")
    g(f"buffer_load_dwordx4 {v(KB,4)}, v{VL16}, {bsrd(SWS)}, s{T1} offen {sc}")
    g(f"buffer_load_dwordx4 {v(KB+4,4)}, v{VL16}, {bsrd(SWS)}, s{T1} offen offset:1024 {sc}")
    g("s_waitcnt vmcnt(0)")
    g(mfma(v(Sx,16), v(KB,4), q(QI,0), 0))
    g(mfma(v(Sx,16), v(KB+4,4), q(QI,1), v(Sx,16)))
    g("s_nop 7"); g("s_nop 7")
    for r in range(0, 16, 2): g(f"v_max3_f32 v{M}, v{M}, v{Sx+r}, v{Sx+r+1}")
    g(f"s_add_u32 s{T1}, s{T1}, 2048")
    g(f"s_add_u32 s{T0}, s{T0}, 1")
    g(f"s_cmp_lt_u32 s{T0}, 64")
    g("s_cbranch_scc1 L_slow_max")
    g(f"v_mov_b32 v{T}, v{M}")
    g("s_nop 1")
    g(f"v_permlane32_swap_b32 v{M}, v{T}")
    g(f"v_max_f32 v{M}, v{M}, v{T}")
    for r in range(16): g(f"v_mov_b32 v{O0+r}, 0")
    g(f"s_add_u32 s{T1}, s{T2}, {WS_K}")
    g(f"s_add_u32 s{T2}, s{T2}, {WS_V}")
    g(f"s_mov_b32 s{T0}, 0")
    g.label("L_slow_pv")
    g(f"buffer_load_dwordx4 {v(KB,4)}, v{VL16}, {bsrd(SWS)}, s{T1} offen {sc}")
    g(f"buffer_load_dwordx4 {v(KB+4,4)}, v{VL16}, {bsrd(SWS)}, s{T1} offen offset:1024 {sc}")
    g(f"buffer_load_dwordx4 {v(KB+8,4)}, v{VL16}, {bsrd(SWS)}, s{T2} offen {sc}")
    g(f"buffer_load_dwordx4 {v(KB+12,4)}, v{VL16}, {bsrd(SWS)}, s{T2} offen offset:1024 {sc}")
    g("s_waitcnt vmcnt(0)")
    g(mfma(v(Sx,16), v(KB,4), q(QI,0), 0))
    g(mfma(v(Sx,16), v(KB+4,4), q(QI,1), v(Sx,16)))
    g("s_nop 7"); g("s_nop 7")
    for r in range(16): g(f"v_sub_f32 v{Sx+r}, v{Sx+r}, v{M}")
    for r in range(16): g(f"v_exp_f32 v{Sx+r}, v{Sx+r}")
    g("s_nop 1")
    for r in range(8): g(f"v_cvt_pk_bf16_f32 v{VP+r}, v{Sx+2*r}, v{Sx+2*r+1}")
    g("s_nop 1")
    g(mfma(v(O0,16), v(KB+8,4), v(VP,4), v(O0,16)))
    g(mfma(v(O0,16), v(KB+12,4), v(VP+4,4), v(O0,16)))
    g(f"s_add_u32 s{T1}, s{T1}, 2048")
    g(f"s_add_u32 s{T2}, s{T2}, 2048")
    g(f"s_add_u32 s{T0}, s{T0}, 1")
    g(f"s_cmp_lt_u32 s{T0}, 64")
    g("s_cbranch_scc1 L_slow_pv")
    g("s_nop 7"); g("s_nop 7")
    L = VT; U = VT+1
    g(f"v_mov_b32 v{L}, v{O0+12}")
    g(f"v_mov_b32 v{U}, v{O0+12}")
    g("s_nop 1")
    g(f"v_permlane32_swap_b32 v{L}, v{U}")
    g(f"v_rcp_f32 v{L}, v{U}")
    g("s_nop 1")
    g("s_branch L_attn_fin")

def p45(g):
    o = g.o; sc = o.sc
    def acc(ct, tt): return v(V4ACC + 16*(2*ct+tt), 16)
    def wf(b, ct, half=None):
        base = V4WF + 8*b + 4*ct
        return v(base, 4) if half is None else v(base + 2*half, 2)
    def rd(n, ct):
        b = n % 3; off = (n % RING)*2048 + ct*512
        g(f"ds_read_b64_tr_b16 {wf(b,ct,0)}, v{VTR4} offset:{off}")
        g(f"ds_read_b64_tr_b16 {wf(b,ct,1)}, v{VTR4} offset:{off+1024}")
    g.A.comment("==== publish O ====")
    g(f"s_lshr_b32 s{T0}, s2, 3")
    g(f"s_cmp_ge_u32 s{T0}, 28")
    g("s_cbranch_scc1 L_tail_publish")
    q_keep = list(g.q)
    g(f"v_lshrrev_b32 v10, 2, v0")
    g(f"s_lshl_b32 s{T0}, s{STB64}, 6")
    g(f"v_add_u32 v10, s{T0}, v10")
    g(f"v_mul_u32_u24 v10, 896, v10")
    g(f"v_and_b32 v11, 3, v0")
    g(f"v_lshlrev_b32 v11, 5, v11")
    g(f"s_lshl_b32 s{T0}, s{SCB}, 7")
    g(f"v_add3_u32 v{VGO}, v10, v11, s{T0}")
    g(f"v_add_u32 v12, s{T0}, v11")
    g.wait(("W0", "W1", "H"))
    for n in range(2):
        for ct in range(2): rd(n, ct)
    def publish_o():
        g.wait("Ost")
        g("s_barrier")
        lab = g.newlab("po")
        g(f"s_cmp_lg_u32 s{SW}, 0")
        g(f"s_cbranch_scc1 {lab}")
        g(f"s_lshl_b32 s{T0}, s{SQB}, 7")
        g(f"s_add_u32 s{T0}, s{T0}, {FLAG3}")
        g("v_mov_b32 v13, 0"); g("v_mov_b32 v14, 1")
        g("s_mov_b64 exec, 1")
        g(f"buffer_atomic_add v14, v13, {bsrd(SWS)}, s{T0} offen sc1")
        g("s_mov_b64 exec, -1")
        g.label(lab)
        g.stamp(12)
    def o_wait_and_load():
        lab = g.newlab("ow")
        g(f"s_cmp_lg_u32 s{SW}, 0")
        g(f"s_cbranch_scc1 {lab}")
        g(f"s_lshr_b32 s{T0}, s{STB64}, 1")
        g(f"s_lshl_b32 s{T0}, s{T0}, 7")
        g(f"s_add_u32 s{T3}, s{T0}, {FLAG3}")
        g("v_mov_b32 v13, 0")
        q0 = list(g.q)
        poll(g, "of", 13, 16, 1)
        g.q = q0
        g.label(lab)
        g("s_barrier")
        g.stamp(13)
        for n in range(28, 36):
            hd, ks = (n-28) >> 1, (n-28) & 1
            for tt in range(2):
                g(f"s_add_u32 s{T1}, s{SOB}, {tt*16*2048 + hd*2048 + ks*1024}")
                g(f"buffer_load_dwordx4 {bfrag(n,tt)}, v{VL16}, {bsrd(SWS)}, s{T1} offen {sc}"); g.issue(f"B{n}")
    for s_ in range(NSTEP):
        if s_ == o.po: publish_o()
        if s_ == 1:
            g(f"buffer_load_dwordx4 {v(V4XR,4)}, v{VGO}, {bsrd(SX)}, 0 offen"); g.issue("xr")
            g(f"buffer_load_dwordx4 {v(V4XR+4,4)}, v{VGO}, {bsrd(SX)}, 0 offen offset:16"); g.issue("xr")
            g(f"buffer_load_dwordx4 {v(V4B2,4)}, v12, {bsrd(SB2)}, 0 offen"); g.issue("xr")
            g(f"buffer_load_dwordx4 {v(V4B2+4,4)}, v12, {bsrd(SB2)}, 0 offen offset:16"); g.issue("xr")
        if s_ == o.xo: o_wait_and_load()
        need = []
        if s_ >= 28: need.append(f"B{s_}")
        if s_+2 < NSTEP: need.append(f"W{s_+2}")
        g.wait(tuple(need))
        for ct in range(2):
            n = 6 if s_+2 < NSTEP else ((2 if ct == 0 else 0) + (4 if s_+1 < NSTEP else 0))
            g(f"s_waitcnt lgkmcnt({n})")
            g(mfma(acc(ct,0), wf(s_%3, ct), bfrag(s_,0), acc(ct,0) if s_ else 0))
            if s_+2 < NSTEP: rd(s_+2, ct)
            g(mfma(acc(ct,1), wf(s_%3, ct), bfrag(s_,1), acc(ct,1) if s_ else 0))
            if ct == 1 and s_ + RING < NSTEP:
                emit_items(g, w_dma_items(s_ + RING))
    g.stamp(14)
    g("s_barrier")
    g(f"v_and_b32 v10, 31, v0")
    g(f"v_mul_u32_u24 v10, 272, v10")
    g(f"v_lshrrev_b32 v11, 5, v0")
    g(f"v_and_b32 v11, 1, v11")
    g(f"v_lshlrev_b32 v11, 4, v11")
    g(f"s_mul_i32 s{T0}, s{SW}, 17408")
    g(f"v_add3_u32 v10, v10, v11, s{T0}")
    g(f"v_lshrrev_b32 v11, 2, v0")
    g(f"v_mul_u32_u24 v11, 272, v11")
    g(f"v_and_b32 v12, 3, v0")
    g(f"v_lshlrev_b32 v12, 6, v12")
    g(f"v_add_u32 v13, v11, v12")
    for tt in range(2):
        for ct in range(2):
            for qd in range(4):
                g(f"ds_write_b128 v10, {v(V4ACC + 16*(2*ct+tt) + 4*qd, 4)} offset:{tt*32*272 + ct*128 + qd*32}")
    g.wait("xr")
    U = V4WF + 24 + 64 + 16 + 8
    for r in range(8):
        g(f"v_lshlrev_b32 v{U+2*r}, 16, v{V4XR+r}")
        g(f"v_and_b32 v{U+2*r+1}, s{SMASK}, v{V4XR+r}")
        g(f"v_lshlrev_b32 v{U+16+2*r}, 16, v{V4B2+r}")
        g(f"v_and_b32 v{U+16+2*r+1}, s{SMASK}, v{V4B2+r}")
    for r in range(0, 16, 2): g(f"v_pk_add_f32 {v(U+r,2)}, {v(U+r,2)}, {v(U+16+r,2)}")
    g("s_waitcnt lgkmcnt(0)")
    g("s_barrier")
    T = V4OF
    for wv in range(4):
        for i in range(4):
            g(f"ds_read_b128 {v(T + 16*wv + 4*i, 4)}, v13 offset:{wv*17408 + i*16}")
        if wv == 2: g("s_waitcnt lgkmcnt(8)")
    g("s_waitcnt lgkmcnt(8)")
    for r in range(0, 16, 2): g(f"v_pk_add_f32 {v(T+r,2)}, {v(T+r,2)}, {v(T+16+r,2)}")
    g("s_waitcnt lgkmcnt(0)")
    for r in range(0, 16, 2): g(f"v_pk_add_f32 {v(T+32+r,2)}, {v(T+32+r,2)}, {v(T+48+r,2)}")
    for r in range(0, 16, 2): g(f"v_pk_add_f32 {v(U+r,2)}, {v(U+r,2)}, {v(T+r,2)}")
    for r in range(0, 16, 2): g(f"v_pk_add_f32 {v(U+r,2)}, {v(U+r,2)}, {v(T+32+r,2)}")
    for r in range(8): g(f"v_cvt_pk_bf16_f32 v{V4T+r}, v{U+2*r}, v{U+2*r+1}")
    g(f"buffer_store_dwordx4 {v(V4T,4)}, v{VGO}, {bsrd(SOUT)}, 0 offen"); g.issue("out")
    g(f"buffer_store_dwordx4 {v(V4T+4,4)}, v{VGO}, {bsrd(SOUT)}, 0 offen offset:16"); g.issue("out")
    g.stamp(15)
    g("s_branch L_done")
    g.label("L_tail_publish")
    g("s_waitcnt vmcnt(0)")
    g("s_barrier")
    g(f"s_cmp_lg_u32 s{SW}, 0")
    g("s_cbranch_scc1 L_done")
    g(f"s_lshl_b32 s{T0}, s{SQB}, 7")
    g(f"s_add_u32 s{T0}, s{T0}, {FLAG3}")
    g("v_mov_b32 v13, 0"); g("v_mov_b32 v14, 1")
    g("s_mov_b64 exec, 1")
    g(f"buffer_atomic_add v14, v13, {bsrd(SWS)}, s{T0} offen sc1")
    g("s_waitcnt vmcnt(0)")

Opt.po = 3
HDR = open("cdna_kernels/" + NAME + ".s.ref").read().split("; Override launch geometry")[0]
def build(opt=None):
    opt = opt or Opt()
    g = G(opt)
    entry(g); p1_setup(g); p1(g); p2(g); attention(g); p45(g)
    g.label("L_done")
    g("s_endpgm")
    attention_slow(g)
    g.label("L_code_end")
    lines = g.A.lines
    import asmlib
    for l in lines:
        if "L_code_end" in l and not l.endswith(":"): asmlib._size_cache[l] = 8
    lines, nn = align_pass(lines)
    errs = hazard.check(lines)
    assert not errs
    g.A.lines = lines
    name = NAME + "_kernel"
    src = HDR + f"; @launch grid=(256,1,1) block=(256,1,1) lds={LDS_BYTES}\n"
    src += '.amdgcn_target "amdgcn-amd-amdhsa--gfx950"\n' + kernel_header(name) + g.A.text() + kernel_desc(name, 512, 96, 256)
    return src
if __name__ == "__main__":
    o = Opt()
    out = sys.argv[1] if len(sys.argv) > 1 else "fused.s"
    if "stamps" in sys.argv: o.stamps = True
    src = build(o)
    open(out, "w").write(src)
    print("written", out, len(src))
```
